```python
import torch

def _softmax(x, axis=-1):
    return torch.softmax(x, dim=axis)
def _gelu(x):
    return torch.nn.functional.gelu(x, approximate="tanh")
def _silu(x):
    return torch.nn.functional.silu(x)
def _sigmoid(x):
    return torch.sigmoid(x)
def _layernorm(x, axis=-1, eps=1e-5):
    m = x.mean(dim=axis, keepdim=True)
    v = x.var(dim=axis, keepdim=True, unbiased=False)
    return (x - m) / torch.sqrt(v + eps)
def _scatter_add(tgt, idx, src, axis=0):
    return tgt.clone().index_add_(axis, idx, src)
def _segment_sum(src, seg, n):
    out = torch.zeros((n,) + src.shape[1:], dtype=src.dtype)
    return out.index_add_(0, seg, src)
def _pad(x, pw):
    flat = tuple(v for pair in reversed(pw) for v in pair)
    return torch.nn.functional.pad(x, flat)

kernel_name = 'gated_mix__mha_block_cached__glu_gated_geglu__decode'

def setup_inputs():

    _w = (lambda a: (lambda t: t.to(torch.bfloat16) if t.is_floating_point() else t)(torch.as_tensor(a)))
    def _A_setup():
        B, Sq, D = 8, 1, 576
        H, Sk, Dh = 32, 4096, 128
        return {
            "x": _w((lambda *s: torch.randn(*s, dtype=torch.bfloat16) * 0.05)(B, Sq, D)),
            "k_cache": _w((lambda *s: torch.randn(*s, dtype=torch.bfloat16) * 3.2)(B, H, Sk, Dh)),
            "v_cache": _w((lambda *s: torch.randn(*s, dtype=torch.bfloat16) * 0.05)(B, H, Sk, Dh)),
            "wq": _w((lambda *s: torch.randn(*s, dtype=torch.bfloat16) * 3.2)(D, H * Dh) * (D ** -0.5)),
            "wo": _w((lambda *s: torch.randn(*s, dtype=torch.bfloat16) * 0.05)(H * Dh, D) * ((H * Dh) ** -0.5)),
        }
    _A_in = _A_setup()

    def _B_setup():
        B, S, Dm, Df = 8, 1, 576, 4608
        return {
            "x": _w((lambda *s: torch.randn(*s, dtype=torch.bfloat16) * 0.05)(B, S, Dm)),
            "w_gate": _w((lambda *s: torch.randn(*s, dtype=torch.bfloat16) * 0.2)(Dm, Df) * (Dm ** -0.5)),
            "w_up": _w((lambda *s: torch.randn(*s, dtype=torch.bfloat16) * 0.2)(Dm, Df) * (Dm ** -0.5)),
            "w_down": _w((lambda *s: torch.randn(*s, dtype=torch.bfloat16) * 0.2)(Df, Dm) * (Df ** -0.5)),
        }
    _B_in = _B_setup()

    return {
        "A_x": _A_in["x"],
        "A_k_cache": _A_in["k_cache"],
        "A_v_cache": _A_in["v_cache"],
        "A_wq": _A_in["wq"],
        "A_wo": _A_in["wo"],
        "B_x": _B_in["x"],
        "B_w_gate": _B_in["w_gate"],
        "B_w_up": _B_in["w_up"],
        "B_w_down": _B_in["w_down"],
        "gate_w": _w((lambda *s: torch.randn(*s, dtype=torch.bfloat16) * 0.05)(576) * 16.0),
    }

def reference(A_x, A_k_cache, A_v_cache, A_wq, A_wo, B_x, B_w_gate, B_w_up, B_w_down, gate_w):
    def _A_ref(x, k_cache, v_cache, wq, wo):
        B, Sq, D = x.shape
        H, Dh = 32, 128
        q = (lambda x, *d: x.permute(*d))((x @ wq).reshape(B, Sq, H, Dh), 0, 2, 1, 3)
        scores = torch.einsum("bhqd,bhkd->bhqk", q, k_cache) * (Dh ** -0.5)
        p = _softmax(scores, axis=-1)
        o = torch.einsum("bhqk,bhkd->bhqd", p, v_cache)
        return (lambda x, *d: x.permute(*d))(o, 0, 2, 1, 3).reshape(B, Sq, H * Dh) @ wo

    def _B_ref(x, w_gate, w_up, w_down):
        g = torch.einsum("bsd,df->bsf", x, w_gate)
        u = torch.einsum("bsd,df->bsf", x, w_up)
        h = _gelu(g) * u
        return torch.einsum("bsf,fd->bsd", h, w_down)

    x = A_x
    g = _sigmoid((x * gate_w).sum(-1, keepdims=True))
    a = _A_ref(x, A_k_cache, A_v_cache, A_wq, A_wo)
    b = _B_ref(x, B_w_gate, B_w_up, B_w_down)
    return g * a + (1 - g) * b
```

```python
import sys, math
KNAME = "gated_mix__mha_block_cached__glu_gated_geglu__decode"
def gen(NW, N, ALT, CH, flag, rot, fname, nvgpr=None, lds=0, empty=False):
    body = (2*ALT*N)//math.gcd(2*ALT, N)
    groups_per_body = body // (2*ALT)
    T = 1024 // NW
    G = T // ALT
    assert G % groups_per_body == 0, (G, groups_per_body)
    assert (groups_per_body*ALT) % CH == 0
    nbody = G // groups_per_body
    L = []
    A = L.append
    A(f"; @launch grid=(256,1,1) block=({NW*64},1,1) lds={lds}")
    A('.amdgcn_target "amdgcn-amd-amdhsa--gfx950"')
    A(".text"); A(f".globl {KNAME}_kernel"); A(".p2align 8"); A(f".type {KNAME}_kernel,@function"); A(f"{KNAME}_kernel:")
    if empty: A("s_endpgm")
    A("s_cmp_ge_u32 s2, 256"); A("s_cbranch_scc1 L_end")
    A("s_load_dwordx4 s[4:7], s[0:1], 8")
    A("s_load_dwordx2 s[20:21], s[0:1], 96")
    A("v_lshrrev_b32 v1, 6, v0"); A("v_and_b32 v2, 63, v0"); A("v_lshlrev_b32 v2, 4, v2")
    A("s_nop 0"); A("v_readfirstlane_b32 s3, v1")
    A("s_waitcnt lgkmcnt(0)")
    A("s_lshl_b32 s16, s2, 20")
    A("s_add_u32 s8, s4, s16"); A("s_addc_u32 s9, s5, 0"); A("s_mov_b32 s10, 0x100000"); A("s_mov_b32 s11, 0x20000")
    A("s_add_u32 s12, s6, s16"); A("s_addc_u32 s13, s7, 0"); A("s_mov_b32 s14, 0x100000"); A("s_mov_b32 s15, 0x20000")
    A(f"s_mul_i32 s17, s3, {CH*1024}")
    if rot:
        A(f"s_mul_i32 s25, s2, {rot}")
        A(f"s_add_u32 s17, s17, s25")
    BUF = 8
    for j in range(4): A(f"v_mov_b32 v{4+j}, 0")
    def issue(s):
        g = s // (2*ALT); rem = s % (2*ALT); mat = rem // ALT; j = rem % ALT
        t = g*ALT + j
        off = ((t//CH)*NW*CH + t%CH)*1024
        hi = off & ~4095; lo = off & 4095
        A(f"s_add_u32 s18, s17, {hi}")
        if rot: A("s_and_b32 s18, s18, 0xfffff")
        srd = "s[8:11]" if mat == 0 else "s[12:15]"
        b = BUF + 4*(s % N)
        A(f"buffer_load_dwordx4 v[{b}:{b+3}], v2, {srd}, s18 offen offset:{lo} {flag}")
    def dobody(lastone):
        for s in range(body):
            b = BUF + 4*(s % N)
            if lastone: A(f"s_waitcnt vmcnt({min(N-1, body-1-s)})")
            else: A(f"s_waitcnt vmcnt({N-1})")
            for j in range(4):
                A(f"v_lshlrev_b32 v3, 16, v{b+j}")
                A(f"v_add_f32 v{4+j}, v{4+j}, v3")
                A(f"v_and_b32 v3, 0xffff0000, v{b+j}")
                A(f"v_add_f32 v{4+j}, v{4+j}, v3")
            if not lastone or s+N < body: issue(s+N)
    for s in range(N): issue(s)
    if nbody > 1:
        A(f"s_mov_b32 s19, {nbody-1}")
        A("L_loop:")
        dobody(False)
        A(f"s_add_u32 s17, s17, {groups_per_body*ALT*NW*1024}")
        A("s_sub_u32 s19, s19, 1"); A("s_cmp_lg_u32 s19, 0"); A("s_cbranch_scc1 L_loop")
    dobody(True)
    A("s_waitcnt vmcnt(0)")
    A("v_xor_b32 v4, v4, v5"); A("v_xor_b32 v6, v6, v7"); A("v_xor_b32 v4, v4, v6")
    A("s_mov_b32 s22, 0x1000000"); A("s_mov_b32 s23, 0x20000")
    A(f"s_lshl_b32 s24, s2, 12"); A("v_lshlrev_b32 v1, 2, v0")
    A("buffer_store_dword v4, v1, s[20:23], s24 offen")
    A("L_end:"); A("s_endpgm")
    nv = nvgpr or (BUF + 4*N)
    A('.section .rodata,"a"'); A(".p2align 6"); A(f".amdhsa_kernel {KNAME}_kernel")
    A(f"  .amdhsa_next_free_vgpr {nv}"); A("  .amdhsa_next_free_sgpr 32"); A(f"  .amdhsa_accum_offset {(nv+3)//4*4}")
    A("  .amdhsa_group_segment_fixed_size 0"); A("  .amdhsa_kernarg_size 104"); A("  .amdhsa_user_sgpr_count 2")
    A("  .amdhsa_user_sgpr_kernarg_segment_ptr 1"); A("  .amdhsa_system_sgpr_workgroup_id_x 1"); A(".end_amdhsa_kernel")
    open(fname, "w").write("\n".join(L) + "\n")

if __name__ == "__main__":
    cfgs = eval(sys.argv[1])
    names = []
    for c in cfgs:
        NW, N, ALT, CH, flag, rot = c
        fn = f"u_{NW}_{N}_{ALT}_{CH}_{flag.replace(' ','') or 'def'}_{rot}.s"
        try:
            gen(NW, N, ALT, CH, flag, rot, fn, lds=96*1024)
            names.append(fn)
        except AssertionError as e:
            print("skip", c, e)
    gen(16,16,16,4,"nt",0,"u_empty.s",lds=96*1024,empty=True); names.append("u_empty.s")
    print(" ".join(names))
    print(",".join('"work/%s"' % n for n in names))
```
